```python
import torch

def _softmax(x, axis=-1):
    return torch.softmax(x, dim=axis)
def _gelu(x):
    return torch.nn.functional.gelu(x, approximate="tanh")
def _silu(x):
    return torch.nn.functional.silu(x)
def _sigmoid(x):
    return torch.sigmoid(x)
def _layernorm(x, axis=-1, eps=1e-5):
    m = x.mean(dim=axis, keepdim=True)
    v = x.var(dim=axis, keepdim=True, unbiased=False)
    return (x - m) / torch.sqrt(v + eps)
def _scatter_add(tgt, idx, src, axis=0):
    return tgt.clone().index_add_(axis, idx, src)
def _segment_sum(src, seg, n):
    out = torch.zeros((n,) + src.shape[1:], dtype=src.dtype)
    return out.index_add_(0, seg, src)
def _pad(x, pw):
    flat = tuple(v for pair in reversed(pw) for v in pair)
    return torch.nn.functional.pad(x, flat)

kernel_name = 'gated_mix__spectral_gfnet__grouped_kv_mqa__prompt'

def setup_inputs():

    _w = (lambda a: (lambda t: t.to(torch.bfloat16) if t.is_floating_point() else t)(torch.as_tensor(a)))
    def _A_setup():
        B, S, D = 1, 2048, 576
        Df = D // 2 + 1
        return {
            "x": _w((lambda *s: torch.randn(*s, dtype=torch.bfloat16) * 0.05)(B, S, D)),
            "w_r": _w((lambda *s: torch.randn(*s, dtype=torch.bfloat16) * 0.8)(S, Df) * 0.02),
            "w_i": _w((lambda *s: torch.randn(*s, dtype=torch.bfloat16) * 0.8)(S, Df) * 0.02),
        }
    _A_in = _A_setup()

    def _B_setup():
        B, S, D, H = 1, 2048, 576, 32
        Dh = D // H
        return {
            "x": _w((lambda *s: torch.randn(*s, dtype=torch.bfloat16) * 0.05)(B, S, D)),
            "wq": _w((lambda *s: torch.randn(*s, dtype=torch.bfloat16) * 0.8)(D, H * Dh)),
            "wk": _w((lambda *s: torch.randn(*s, dtype=torch.bfloat16) * 0.8)(D, Dh)),
            "wv": _w((lambda *s: torch.randn(*s, dtype=torch.bfloat16) * 0.05)(D, Dh)),
            "wo": _w((lambda *s: torch.randn(*s, dtype=torch.bfloat16) * 0.05)(H * Dh, D)),
        }
    _B_in = _B_setup()

    return {
        "A_x": _A_in["x"],
        "A_w_r": _A_in["w_r"],
        "A_w_i": _A_in["w_i"],
        "B_x": _B_in["x"],
        "B_wq": _B_in["wq"],
        "B_wk": _B_in["wk"],
        "B_wv": _B_in["wv"],
        "B_wo": _B_in["wo"],
        "gate_w": _w((lambda *s: torch.randn(*s, dtype=torch.bfloat16) * 0.05)(576) * 16.0),
    }

def reference(A_x, A_w_r, A_w_i, B_x, B_wq, B_wk, B_wv, B_wo, gate_w):
    def _A_ref(x, w_r, w_i):
        B, S, D = x.shape
        X = (lambda x, axes=(-2,-1): torch.fft.rfft2(x.float(), dim=axes))(x, axes=(-2, -1))
        W = w_r + 1j * w_i
        X = X * W
        y = (lambda x, s, axes=(-2,-1): torch.fft.irfft2(x, s=s, dim=axes).to(torch.bfloat16))(X, (S, D), axes=(-2, -1))
        return y

    def _B_ref(x, wq, wk, wv, wo):
        B, S, D = x.shape
        H = 32
        Dh = D // H
        q = (lambda x, *d: x.permute(*d))((x @ wq).reshape(B, S, H, Dh), 0, 2, 1, 3)
        k = x @ wk
        v = x @ wv
        scores = torch.einsum("bhqd,bkd->bhqk", q, k) * (Dh ** -0.5)
        p = _softmax(scores, axis=-1)
        o = torch.einsum("bhqk,bkd->bhqd", p, v)
        return (lambda x, *d: x.permute(*d))(o, 0, 2, 1, 3).reshape(B, S, H * Dh) @ wo

    x = A_x
    g = _sigmoid((x * gate_w).sum(-1, keepdims=True))
    a = _A_ref(x, A_w_r, A_w_i)
    b = _B_ref(x, B_wq, B_wk, B_wv, B_wo)
    return g * a + (1 - g) * b
```

```python
import re

class Asm:
    def __init__(self):
        self.lines = []
    def __call__(self, s):
        for ln in s.split("\n"):
            ln = ln.strip()
            if ln:
                self.lines.append(ln if ln.endswith(":") or ln.startswith(".") else "    " + ln)
    def label(self, name):
        self.lines.append(name + ":")
    def text(self):
        return "\n".join(self.lines) + "\n"

def v(a, n=1):
    return f"v{a}" if n == 1 else f"v[{a}:{a+n-1}]"
def s(a, n=1):
    return f"s{a}" if n == 1 else f"s[{a}:{a+n-1}]"

TRANS = ("v_exp_f32", "v_log_f32", "v_rcp_f32", "v_rsq_f32", "v_sqrt_f32", "v_sin_f32", "v_cos_f32")
def _regs(op):
    op = op.strip()
    op = re.sub(r"^-|^abs\(|\)$|\|", "", op)
    m = re.fullmatch(r"([vsa])\[(\d+):(\d+)\]", op)
    if m: return {(m.group(1), i) for i in range(int(m.group(2)), int(m.group(3))+1)}
    m = re.fullmatch(r"([vsa])(\d+)", op)
    if m: return {(m.group(1), int(m.group(2)))}
    if op == "vcc": return {("s", "vcc")}
    if op == "exec": return {("s", "exec")}
    if op == "m0": return {("s", "m0")}
    return set()

def mfma_passes(mn):
    if "32x32x4_2b" in mn: return 16
    if "32x32x16" in mn or "32x32x8" in mn: return 8
    if "16x16x32" in mn or "16x16x16" in mn: return 4
    raise ValueError(mn)

class Ins:
    def __init__(self, text, idx):
        self.text = text; self.idx = idx
        t = text.split(";")[0].strip()
        parts = t.split(None, 1)
        self.mn = parts[0]
        rest = parts[1] if len(parts) > 1 else ""
        ops = [o.strip() for o in re.split(r",(?![^\[]*\])", rest)] if rest else []
        if ops:
            last = ops[-1].split()
            self.mods = " ".join(last[1:]); ops[-1] = last[0] if last else ""
        else:
            self.mods = ""
        self.ops = ops
        mn = self.mn
        self.is_mfma = mn.startswith("v_mfma")
        self.is_valu = mn.startswith("v_") and not self.is_mfma
        self.is_trans = any(mn.startswith(x) for x in TRANS)
        self.is_ds = mn.startswith("ds_")
        self.is_vmem = mn.startswith(("buffer_", "global_", "flat_"))
        self.is_salu = mn.startswith("s_")
        self.states = 1
        if mn == "s_nop": self.states = int(ops[0]) + 1
        R = [_regs(o) for o in ops]
        self.w = set(); self.r = set(); self.C = set(); self.AB = set(); self.data = set()
        if self.is_mfma:
            self.w = R[0]; self.AB = R[1] | R[2]; self.C = R[3]; self.r = self.AB | self.C
            self.passes = mfma_passes(mn)
        elif self.is_valu:
            if mn.startswith("v_cmp"):
                self.w = R[0]; self.r = set().union(*R[1:])
                if mn.startswith("v_cmpx"): self.w |= {("s", "exec")}
            elif mn.startswith(("v_add_co", "v_sub_co", "v_addc_co", "v_subb_co")):
                self.w = R[0] | R[1]; self.r = set().union(*R[2:])
            elif mn.startswith("v_permlane"):
                self.w = R[0] | R[1]; self.r = R[0] | R[1]
            else:
                self.w = R[0]; self.r = set().union(*R[1:]) if len(R) > 1 else set()
                if mn.startswith(("v_fmac", "v_dot2c")) or "dpp" in mn or "sdwa" in mn: self.r |= R[0]
        elif self.is_ds:
            if mn.startswith(("ds_read", "ds_bpermute", "ds_swizzle")) or "rtn" in mn:
                self.w = R[0]; self.r = set().union(*R[1:])
            else:
                self.r = set().union(*R)
        elif self.is_vmem:
            lds = "lds" in self.mods.split() or "_lds_" in mn
            if "load" in mn and not lds:
                self.w = R[0]; self.r = set().union(*R[1:])
            else:
                self.r = set().union(*R) if R else set()
                if "store" in mn and ("x3" in mn or "x4" in mn):
                    self.data = R[0] if mn.startswith("buffer") else R[1]
            if lds: self.r |= {("s", "m0")}
            self.lds = lds
        elif self.is_salu:
            if mn.startswith(("s_cmp", "s_cbranch", "s_branch", "s_waitcnt", "s_nop", "s_barrier", "s_endpgm", "s_setprio", "s_sleep")):
                self.r = set().union(*R) if R else set()
            else:
                self.w = R[0] if R else set(); self.r = set().union(*R[1:]) if len(R) > 1 else set()
                if "saveexec" in mn: self.w |= {("s", "exec")}

def need(p, c):
    n = 0
    vg = lambda S: {x for x in S if x[0] in "va"}
    sg = lambda S: {x for x in S if x[0] == "s"}
    if p.is_mfma:
        P = p.passes
        big = {2: 5, 4: 8, 8: 12, 16: 20}[P]
        if c.is_mfma:
            if p.w & c.AB: n = max(n, big)
            if p.w & c.C:
                if p.w == c.C and p.passes == c.passes: n = max(n, 2 if P == 2 else 0)
                else: n = max(n, {2: 4, 4: 6, 8: 10, 16: 18}[P])
            elif p.w & c.w: n = max(n, big)
        elif c.is_valu or c.is_ds or c.is_vmem:
            if p.w & (c.r | c.w): n = max(n, big)
            if c.is_valu and (p.C & c.w): n = max(n, {2: 1, 4: 3, 8: 7, 16: 15}[P])
    if p.is_valu:
        if c.is_mfma and vg(p.w) & c.r: n = max(n, 2)
        if c.is_mfma and ("s", "exec") in p.w: n = max(n, 4)
        if p.is_trans and c.is_valu and not c.is_trans and vg(p.w) & c.r: n = max(n, 1)
        if c.is_valu and sg(p.w) & c.r: n = max(n, 4 if c.mn.startswith(("v_readlane", "v_writelane")) else 2)
        if c.is_vmem and sg(p.w) & c.r: n = max(n, 5)
        if c.mn.startswith(("v_readlane", "v_readfirstlane")) and vg(p.w) & c.r: n = max(n, 1)
        if c.mn.startswith("v_permlane") and vg(p.w) & c.r: n = max(n, 2)
        if "dpp" in c.mn and vg(p.w) & c.r: n = max(n, 2)
        if ("sdwa" in p.mn or "op_sel" in p.mods) and c.is_valu and vg(p.w) & (c.r | c.w): n = max(n, 1)
    if p.is_salu and ("s", "m0") in p.w and c.is_vmem and getattr(c, "lds", False): n = max(n, 1)
    if p.is_vmem and p.data and (p.data & c.w): n = max(n, 2 if c.is_valu else 1)
    return n

def check(text, verbose=True):
    ins = []; labels = {}
    for ln in text.split("\n"):
        t = ln.split(";")[0].strip()
        if not t or t.startswith("."): continue
        if t.endswith(":"):
            labels[t[:-1]] = len(ins); continue
        ins.append(Ins(t, len(ins)))
    succ = {}
    for i, x in enumerate(ins):
        nx = []
        if x.mn == "s_endpgm": pass
        elif x.mn == "s_branch": nx = [labels[x.ops[0]]]
        elif x.mn.startswith("s_cbranch"): nx = [i+1, labels[x.ops[0]]]
        else: nx = [i+1]
        succ[i] = [j for j in nx if j < len(ins)]
    bad = set()
    for i, p in enumerate(ins):
        if not (p.is_mfma or p.is_valu or p.data or ("s", "m0") in p.w): continue
        stack = [(j, 0) for j in succ[i]]; seen = {}
        while stack:
            j, d = stack.pop()
            if d >= 20 or seen.get(j, 99) <= d: continue
            seen[j] = d
            c = ins[j]
            n = need(p, c)
            if n > d: bad.add((i, j, n, d))
            for k in succ[j]: stack.append((k, d + c.states))
    for i, j, n, d in sorted(bad):
        print(f"HAZARD need {n} have {d}:\n   [{i}] {ins[i].text}\n   [{j}] {ins[j].text}")
    return len(bad)

def autopad(text, verbose=True):
    for _ in range(2000):
        lines = text.split("\n")
        ins = []; labels = {}; where = []
        for li, ln in enumerate(lines):
            t = ln.split(";")[0].strip()
            if not t or t.startswith("."): continue
            if t.endswith(":"):
                labels[t[:-1]] = len(ins); continue
            ins.append(Ins(t, len(ins))); where.append(li)
        succ = {}
        for i, x in enumerate(ins):
            if x.mn == "s_endpgm": nx = []
            elif x.mn == "s_branch": nx = [labels[x.ops[0]]]
            elif x.mn.startswith("s_cbranch"): nx = [i+1, labels[x.ops[0]]]
            else: nx = [i+1]
            succ[i] = [j for j in nx if j < len(ins)]
        worst = {}
        for i, p in enumerate(ins):
            if not (p.is_mfma or p.is_valu or p.data or ("s", "m0") in p.w): continue
            stack = [(j, 0) for j in succ[i]]; seen = {}
            while stack:
                j, d = stack.pop()
                if d >= 20 or seen.get(j, 99) <= d: continue
                seen[j] = d
                n = need(p, ins[j])
                if n > d: worst[j] = max(worst.get(j, 0), n - d)
                for k in succ[j]: stack.append((k, d + ins[j].states))
        if not worst: return text
        j = min(worst); k = worst[j]
        pad = []
        while k > 0:
            m = min(k, 16); pad.append(f"    s_nop {m-1} ; pad"); k -= m
        if verbose: print(f"pad {worst[j]} before: {ins[j].text}")
        lines[where[j]:where[j]] = pad
        text = "\n".join(lines)
    raise RuntimeError("autopad did not converge")
```

```python
import numpy as np
def bf16_round(x):
    x = np.ascontiguousarray(x, dtype=np.float32)
    u = x.view(np.uint32)
    r = ((u + 0x7FFF + ((u >> 16) & 1)) >> 16).astype(np.uint32) << 16
    return r.view(np.float32)
def bf2f(u16):
    return (u16.astype(np.uint32) << 16).view(np.float32)
def cr(z):
    return bf16_round(z.real) + 1j * bf16_round(z.imag)

def fft_branch(x, wr, wi, rnd=True):
    R = cr if rnd else (lambda z: z)
    S, D = 2048, 576
    z = (x[:1024] + 1j * x[1024:]).astype(np.complex128)
    n = np.arange(24)
    F24 = R(np.exp(-2j*np.pi*np.outer(n, n)/24))
    tw = np.exp(-2j*np.pi*np.outer(n, n)/576)
    zz = z.reshape(1024, 24, 24)
    D1 = np.einsum('rab,af->rbf', zz, F24)
    T = R(D1 * tw)
    D2 = np.einsum('gb,rbf->rgf', F24, T)
    Zh = R(D2.reshape(1024, 576))
    s1 = np.arange(32); k1 = np.arange(64); s0 = np.arange(32); k2 = np.arange(32)
    w = np.exp(-2j*np.pi*np.outer(s1, k1)/64)
    sig = (-1.0)**k1
    al = R(w*(1-1j*sig)/2); be = R(w*(1+1j*sig)/2)
    tw1 = np.exp(-2j*np.pi*np.outer(s0, k1)/2048)
    F32 = R(np.exp(-2j*np.pi*np.outer(k2, s0)/32))
    ga = R(np.conj(w)*(1+1j*sig)); de = R(w*(1+1j*sig))
    cw = R(np.conj(w))
    W = (wr + 1j*wi).astype(np.complex128)
    Zo = np.zeros((1024, 576), np.complex128)
    for f in range(289):
        u = Zh[:, f].reshape(32, 32); v = Zh[:, (-f) % 576].reshape(32, 32)
        A = np.einsum('ab,ak->bk', u, al) + np.einsum('ab,ak->bk', np.conj(v), be)
        T1 = R(A * tw1)
        X = F32 @ T1
        U = R(X * W[:, f].reshape(32, 64))
        B = np.einsum('ck,cb->kb', U, np.conj(F32))
        T2 = R(B * np.conj(tw1).T)
        if f in (0, 288):
            Y0 = cw @ T2; Y1 = (cw*sig) @ T2
            Zo[:, f] = R(Y0.real + 1j*Y1.real).reshape(-1)
        else:
            Zo[:, f] = R(ga @ T2).reshape(-1)
            Zo[:, 576-f] = R(de @ np.conj(T2)).reshape(-1)
    zz = Zo.reshape(1024, 24, 24)
    E1 = np.einsum('rba,bl->ral', zz, np.conj(F24))
    T3 = R(E1 * np.conj(tw) / (2048*576))
    E2 = np.einsum('ral,ah->rhl', T3, np.conj(F24))
    y = E2.reshape(1024, 576)
    a = np.concatenate([y.real, y.imag], 0)
    return (bf16_round(a) if rnd else a), Zh, Zo

def attn_branch(x, wq, wk, wv, wo):
    c = np.float32(np.log2(np.e) / np.sqrt(18))
    q = bf16_round((x @ wq) * c); k = bf16_round(x @ wk); v = bf16_round(x @ wv)
    o = np.zeros((2048, 576), np.float32)
    for h in range(32):
        s = q[:, 18*h:18*h+18] @ k.T
        p = bf16_round(np.exp2(s))
        o[:, 18*h:18*h+18] = (p @ v) / p.sum(1, keepdims=True)
    o = bf16_round(o)
    return o @ wo, q, k, v, o

if __name__ == "__main__":
    d = np.load("ref0.npz")
    x = bf2f(d["A_x"])[0]; ref = bf2f(d["out"])[0]
    wr, wi = bf2f(d["A_w_r"]), bf2f(d["A_w_i"])
    a_exact = np.fft.irfft2(np.fft.rfft2(x.astype(np.float64)) * (wr + 1j*wi), s=(2048, 576))
    a0, _, _ = fft_branch(x, wr, wi, rnd=False)
    print("structure check (no rounding):", np.abs(a0 - a_exact).max(), np.abs(a_exact).max())
    a, _, _ = fft_branch(x, wr, wi)
    print("fft branch rel l2 err vs exact:", np.linalg.norm(a - a_exact)/np.linalg.norm(a_exact), " bf16-only:", np.linalg.norm(bf16_round(a_exact) - a_exact)/np.linalg.norm(a_exact))
    b, q, k, v, o = attn_branch(x, bf2f(d["B_wq"]), bf2f(d["B_wk"]), bf2f(d["B_wv"]), bf2f(d["B_wo"]))
    g = 1/(1+np.exp(-(x @ bf2f(d["gate_w"]))))[:, None]
    out = bf16_round(g*a + (1-g)*b)
    e = out - ref
    print("total rel l2:", np.linalg.norm(e)/np.linalg.norm(ref), "max abs", np.abs(e).max(), "ref max", np.abs(ref).max(), "ref rms", ref.std())
    out2 = bf16_round(g*a_exact + (1-g)*b)
    e2 = out2 - ref
    print("with exact fft: rel l2:", np.linalg.norm(e2)/np.linalg.norm(ref), "max abs", np.abs(e2).max())
    print("a rms", a.std(), "b rms", b.std(), "qn max", np.sqrt((q.reshape(2048,32,18)**2).sum(-1)).max(), "kn max", np.sqrt((k**2).sum(-1)).max())
    for rt, at in ((1e-2,1e-5),(1e-2,1e-4),(2e-2,1e-4),(5e-2,1e-4),(1e-2,1e-3)):
        print(rt, at, "frac ok", (np.abs(e) <= at + rt*np.abs(ref)).mean(), (np.abs(e2) <= at + rt*np.abs(ref)).mean())
```

```python
import numpy as np
from emu import bf16_round

def f2bf(x):
    return (bf16_round(np.asarray(x, np.float32)).view(np.uint32) >> 16).astype(np.uint16)

L = np.arange(64); N = L & 31; H = L >> 5
E = np.arange(8)

def frag(fn):
    v = np.zeros((64, 8))
    for l in range(64):
        for e in range(8):
            v[l, e] = fn(l & 31, l >> 5, e)
    return f2bf(v).tobytes()

def quad(fn):
    v = np.zeros((64, 4), np.float32)
    for l in range(64):
        for r in range(4):
            v[l, r] = fn(l & 31, l >> 5, r)
    return v.tobytes()

def build():
    blob = bytearray(); off = {}
    def add(name, data):
        off[name] = len(blob); blob.extend(data)
    pi2 = 2*np.pi
    d = b""
    for out in (0, 1):
        for u in range(3):
            def fn(n, h, e):
                Q = 2*u + (e >> 2); part, g = divmod(Q, 3); idx = 8*g + 4*h + (e & 3)
                if n >= 24: return 0.0
                c, s = np.cos(pi2*idx*n/24), np.sin(pi2*idx*n/24)
                return (c if part == 0 else s) if out == 0 else (-s if part == 0 else c)
            d += frag(fn)
    add("F24", d)
    d = b""
    for cs in (0, 1):
        for g in range(3):
            d += quad(lambda n, h, r: 0.0 if n >= 24 else (np.cos, np.sin)[cs](pi2*(8*g+4*h+r)*n/576))
    add("TW1", d)
    d = b""
    for out in (0, 1):
        for t in range(3):
            def fn(n, h, e):
                fb = 8*t + 4*h + (e >> 1); part = e & 1
                if n >= 24: return 0.0
                c, s = np.cos(pi2*fb*n/24), np.sin(pi2*fb*n/24)
                return (c if part == 0 else -s) if out == 0 else (s if part == 0 else c)
            d += frag(fn)
    add("P3A", d)
    d = b""; sc = 1.0/(2048*576)
    for cs in (0, 1):
        for g in range(3):
            d += quad(lambda n, h, r: 0.0 if n >= 24 else sc*(np.cos(pi2*(8*g+4*h+r)*n/576) if cs == 0 else -np.sin(pi2*(8*g+4*h+r)*n/576)))
    add("TW3", d)
    d = b""
    for kh in (0, 1):
        for out in (0, 1):
            for t in range(8):
                def fn(n, h, e):
                    k1 = 32*kh + n; c = t >> 2; j = 2*(t & 3) + h; s1 = 4*j + (e >> 1); part = e & 1
                    w = np.exp(-1j*pi2*s1*k1/64); sg = (-1.0)**k1
                    if c == 0:
                        a = w*(1-1j*sg)/2
                        return (a.real if part == 0 else -a.imag) if out == 0 else (a.imag if part == 0 else a.real)
                    b = w*(1+1j*sg)/2
                    return (b.real if part == 0 else b.imag) if out == 0 else (b.imag if part == 0 else -b.real)
                d += frag(fn)
    add("TA", d)
    d = b""
    for kind in (0, 1, 2):
        for u in range(2):
            def fn(n, h, e):
                idx = 16*u + 8*(e >> 2) + 4*h + (e & 3)
                th = pi2*idx*n/32
                return (np.cos(th), np.sin(th), -np.sin(th))[kind]
            d += frag(fn)
    add("F32", d)
    d = b""
    for kh in (0, 1):
        for cs in (0, 1):
            for g in range(4):
                d += quad(lambda n, h, r: (np.cos, np.sin)[cs](pi2*(8*g+4*h+r)*(32*kh+n)/2048))
    add("TWA", d)
    d = b""
    for kh in (0, 1):
        for cs in (0, 1):
            for g in range(4):
                d += quad(lambda n, h, r: np.cos(pi2*(32*kh+8*g+4*h+r)*n/2048) if cs == 0 else -np.sin(pi2*(32*kh+8*g+4*h+r)*n/2048))
    add("TWB", d)
    d = b""
    for var in (0, 1, 2):
        for out in (0, 1):
            for t in range(8):
                kh, part, u = t >> 2, (t >> 1) & 1, t & 1
                def fn(n, h, e):
                    k1 = 32*kh + 16*u + 8*(e >> 2) + 4*h + (e & 3); s1 = n
                    th = pi2*s1*k1/64; c, s = np.cos(th), np.sin(th); sg = (-1.0)**k1
                    if var == 0:
                        gr, gi = c - sg*s, s + sg*c
                        return (gr if part == 0 else -gi) if out == 0 else (gi if part == 0 else gr)
                    if var == 1:
                        dr, di = c + sg*s, sg*c - s
                        return (dr if part == 0 else di) if out == 0 else (di if part == 0 else -dr)
                    return (c if part == 0 else -s) if out == 0 else (sg*c if part == 0 else -sg*s)
                d += frag(fn)
    add("TB", d)
    return bytes(blob), off

if __name__ == "__main__":
    b, o = build()
    print(len(b), o)
```

```python
import sys, struct
import numpy as np
from asmlib import Asm, v, s, autopad, check
import tables

NAME = "gated_mix__spectral_gfnet__grouped_kv_mqa__prompt"
BLOB, TOFF = tables.build()

WS_KV, WS_G, WS_KMAX, WS_FLAGS = 0, 0x28000, 0x2A000, 0x2B000
WS_Q = 0x40000
WS_O = WS_Q + 0x240000
WS_A = WS_O + 0x240000
WS_X1 = WS_A + 0x240000
WS_Z = WS_X1 + 0x240000
WS_WT = WS_Z + 0x240000
WS_USED = WS_WT + 0x242000
WS_END = 0x1100000
CH = 9472
ROWB = 1152
XBYTES = 2048 * ROWB
BOUND2 = 40.0**2
QSCALE = float(np.log2(np.e) / np.sqrt(18))
def f32(x): return "0x%08x" % struct.unpack("<I", struct.pack("<f", x))[0]

def srd(a, dst, ptr, nbytes):
    a(f"s_mov_b32 s{dst}, s{ptr}\ns_mov_b32 s{dst+1}, s{ptr+1}\ns_mov_b32 s{dst+2}, {nbytes}\ns_mov_b32 s{dst+3}, 0x20000")

def tbl_srd(a, dst, tag):
    a(f"s_getpc_b64 s[{dst}:{dst+1}]")
    a(f"s_add_u32 s{dst}, s{dst}, tbl_blob@rel32@lo+4\ns_addc_u32 s{dst+1}, s{dst+1}, tbl_blob@rel32@hi+12")
    a(f"s_mov_b32 s{dst+2}, {len(BLOB)}\ns_mov_b32 s{dst+3}, 0x20000")

STAMP = False
WS_STAMP = 0x1000000
def stamp(a, i):
    if STAMP: a(f"s_memrealtime s[{70+2*i}:{71+2*i}]")
    if STAMP and i == 0: a("s_memtime s[86:87]")
def finish(a, kern):
    if STAMP:
        a("s_waitcnt vmcnt(0) lgkmcnt(0)\ns_memrealtime s[84:85]\ns_memtime s[88:89]")
        a(f"s_lshl_b32 s92, s2, 3\ns_add_u32 s92, s92, s97\ns_lshl_b32 s92, s92, 5\ns_add_u32 s92, s92, {WS_STAMP + kern*0x10000}")
        a("s_mov_b64 exec, 1\ns_waitcnt lgkmcnt(0)\nv_mov_b32 v8, 0")
        a("s_sub_u32 s88, s88, s86\ns_sub_u32 s86, s84, s70\nv_mov_b32 v9, s88\nv_mov_b32 v10, s86\ns_add_u32 s93, s92, 0x80000")
        a("buffer_store_dword v9, v8, s[32:35], s93 offen\nbuffer_store_dword v10, v8, s[32:35], s93 offen offset:4")
        for i in range(8): a(f"v_mov_b32 v{i}, s{70+2*i}")
        a("buffer_store_dwordx4 v[0:3], v8, s[32:35], s92 offen\nbuffer_store_dwordx4 v[4:7], v8, s[32:35], s92 offen offset:16")
    a("s_endpgm")

REG = 23168
XF, ACC, WF = 64, 136, 160
DA = 16
TRB = 32

def gemm_addr(a, sWV, special=None):
    for q in range(5):
        a(f"v_add_u32 v8, {64*q}, v1")
        a(f"v_mul_u32_u24 v9, 6554, v8\nv_lshrrev_b32 v9, 16, v9")
        a(f"v_mul_u32_u24 v10, 10, v9\nv_sub_u32 v{40+q}, v8, v10")
        a(f"v_lshrrev_b32 v10, 3, v9\nv_mad_u32_u24 v9, v10, 24, v9")
        a(f"v_add_u32 v{45+q}, s{sWV}, v9")

def gemm_loop(a, issue, extra_at3=None, n_extra=0):
    cnt = [9, 9, 9, 9, 5]
    def reads(t, T):
        r = WF + 20*(t % 2) + 4*T
        a(f"ds_read_b64_tr_b16 v[{r}:{r+1}], v{TRB} offset:{t*1280 + T*32}")
        a(f"ds_read_b64_tr_b16 v[{r+2}:{r+3}], v{TRB} offset:{t*1280 + T*32 + 640}")
    def boundary(m):
        newer = cnt[m+1] if m < 4 else n_extra
        if m == 0: stamp(a, 1)
        a(f"s_waitcnt vmcnt({newer})\ns_barrier")
        stamp(a, 2 + m) if m < 3 else None
        if m + 2 <= 4: issue(m + 2)
        elif m == 3 and extra_at3: extra_at3()
    boundary(0)
    for T in range(5): reads(0, T)
    for t in range(18):
        if t + 1 < 18 and (t + 1) % 4 == 0: boundary((t + 1) // 4)
        for T in range(5):
            if t + 1 < 18:
                reads(t + 1, T); a("s_waitcnt lgkmcnt(10)")
            else:
                a(f"s_waitcnt lgkmcnt({8 - 2*T})")
            r = WF + 20*(t % 2) + 4*T
            c = "0" if t == 0 else v(ACC + 4*T, 4)
            a(f"v_mfma_f32_16x16x32_bf16 {v(ACC+4*T,4)}, {v(r,4)}, {v(XF+4*t,4)}, {c}")

def gemm_lane_setup(a, sB, sWV):
    a("v_and_b32 v1, 63, v0\nv_and_b32 v2, 15, v0\nv_bfe_u32 v3, v0, 4, 2")
    a(f"s_lshl_b32 s60, s{sB}, 6\ns_lshl_b32 s61, s{sWV}, 4\ns_add_u32 s60, s60, s61")
    a("v_add_u32 v4, s60, v2")
    a(f"v_mul_u32_u24 v5, {ROWB}, v4\nv_lshl_add_u32 v6, v3, 4, v5")

def tr_base(a):
    a(f"v_mul_u32_u24 v{TRB}, {REG}, v3\nv_lshrrev_b32 v8, 2, v2\nv_mul_u32_u24 v8, 160, v8")
    a(f"v_and_b32 v9, 3, v0\nv_lshl_add_u32 v8, v9, 3, v8\nv_add_u32 v{TRB}, v{TRB}, v8")

def xloads(a, m, sX, soff="0"):
    for t in range(4*m, min(4*m + 4, 18)):
        a(f"buffer_load_dwordx4 {v(XF+4*t,4)}, v6, {s(sX,4)}, {soff} offen offset:{64*t}")

K1_ROWS, K1_TBL, K1_XT, K1_WIN, K1_LDS = 92672, 104960, 117248, 126464, 138752

def k1(a):
    a.label("k1_kernel")
    a("s_cmp_ge_u32 s2, 256\ns_cbranch_scc1 k1_end")
    stamp(a, 0)
    a("s_load_dwordx4 s[4:7], s[0:1], 0\ns_load_dwordx2 s[8:9], s[0:1], 16\ns_load_dwordx8 s[12:19], s[0:1], 32")
    a("s_load_dwordx2 s[20:21], s[0:1], 64\ns_load_dwordx2 s[22:23], s[0:1], 88")
    a("v_lshrrev_b32 v1, 6, v0\ns_and_b32 s52, s2, 31\ns_lshr_b32 s53, s2, 5\nv_readfirstlane_b32 s3, v1")
    a("s_waitcnt lgkmcnt(0)")
    if STAMP: a("s_mov_b32 s97, s3")
    stamp(a, 5)
    srd(a, 24, 4, XBYTES); srd(a, 32, 22, WS_END)
    a("s_cmp_ge_u32 s3, 4\ns_cbranch_scc1 k1_aux")
    gemm_lane_setup(a, 52, 3)
    xloads(a, 0, 24)
    srd(a, 28, 12, 576*ROWB)
    a("s_lshl_b32 s54, s3, 3")
    gemm_addr(a, 54)
    a(f"s_mul_i32 s55, s3, {REG}\ns_mov_b32 s56, 0")
    a("s_cmp_eq_u32 s53, 7\ns_cselect_b32 s64, 1, 0\ns_cmp_eq_u32 s64, 1\ns_cbranch_scc1 k1_sp_addr")
    a("s_mul_i32 s57, s53, 160")
    for q in range(5):
        a(f"v_mul_u32_u24 v8, {ROWB}, v{45+q}\nv_lshl_add_u32 v8, v{40+q}, 4, v8\nv_add_u32 v{DA+2*q}, s57, v8")
    a("s_branch k1_addr_done")
    a.label("k1_sp_addr")
    for q in range(5):
        p, k = 40+q, 45+q
        a(f"v_cmp_gt_u32 vcc, 6, v{p}\nv_subrev_u32 v8, 2, v{p}\nv_subrev_u32 v9, 6, v{p}")
        a("v_mov_b32 v10, s16\nv_mov_b32 v11, s14\nv_mov_b32 v12, s17\nv_mov_b32 v13, s15")
        a("v_cndmask_b32 v8, v9, v8, vcc\nv_cndmask_b32 v10, v10, v11, vcc\nv_cndmask_b32 v12, v12, v13, vcc")
        a("v_lshlrev_b32 v8, 4, v8\nv_min_u32 v8, 20, v8")
        a(f"v_mad_u32_u24 v8, v{k}, 36, v8")
        a(f"v_cmp_gt_u32 vcc, 2, v{p}\nv_mul_u32_u24 v9, {ROWB}, v{k}\nv_lshl_add_u32 v9, v{p}, 4, v9\nv_add_u32 v9, 1120, v9")
        a(f"v_mov_b32 v11, s12\nv_mov_b32 v13, s13\nv_mov_b32 v14, {128*36}\nv_mov_b32 v15, {128*ROWB}")
        a(f"v_cndmask_b32 v8, v8, v9, vcc\nv_cndmask_b32 v10, v10, v11, vcc\nv_cndmask_b32 v12, v12, v13, vcc\nv_cndmask_b32 v{26+q}, v14, v15, vcc")
        a(f"v_add_co_u32 v{DA+2*q}, vcc, v10, v8\nv_addc_co_u32 v{DA+2*q+1}, vcc, 0, v12, vcc")
    a.label("k1_addr_done")
    def wdma(m):
        nq = 5 if m < 4 else 3
        a(f"s_cmp_eq_u32 s64, 1\ns_cbranch_scc1 k1_sp_dma{m}")
        for q in range(nq):
            a(f"s_add_u32 m0, s55, {m*5120 + q*1024}")
            a("s_mov_b64 exec, 0xffffffff" if (m == 4 and q == 2) else "s_nop 0")
            a(f"buffer_load_dwordx4 v{DA+2*q}, s[28:31], s56 offen lds")
        a(f"s_add_u32 s56, s56, {128*ROWB}")
        a(f"s_branch k1_dma_done{m}")
        a.label(f"k1_sp_dma{m}")
        for q in range(nq):
            a(f"s_add_u32 m0, s55, {m*5120 + q*1024}")
            a("s_mov_b64 exec, 0xffffffff" if (m == 4 and q == 2) else "s_nop 0")
            a(f"global_load_lds_dwordx4 v[{DA+2*q}:{DA+2*q+1}], off")
            if m < 4:
                a(f"v_add_co_u32 v{DA+2*q}, vcc, v{DA+2*q}, v{26+q}\nv_addc_co_u32 v{DA+2*q+1}, vcc, 0, v{DA+2*q+1}, vcc")
        a.label(f"k1_dma_done{m}")
        if m == 4: a("s_mov_b64 exec, -1")
    wdma(0)
    xloads(a, 1, 24); wdma(1)
    tr_base(a)
    def issue(m):
        xloads(a, m, 24); wdma(m)
    gemm_loop(a, issue)
    stamp(a, 6)
    a(f"s_mov_b32 s58, {f32(QSCALE)}\ns_mov_b32 s59, s58")
    a(f"s_mul_i32 s57, s53, 160\ns_add_u32 s57, s57, {WS_Q}")
    a("v_lshl_add_u32 v7, v3, 3, v5")
    def qstore(T):
        r = ACC + 4*T
        a(f"v_pk_mul_f32 v[{r}:{r+1}], v[{r}:{r+1}], s[58:59]\nv_pk_mul_f32 v[{r+2}:{r+3}], v[{r+2}:{r+3}], s[58:59]")
        a(f"v_cvt_pk_bf16_f32 v{r}, v{r}, v{r+1}\nv_cvt_pk_bf16_f32 v{r+1}, v{r+2}, v{r+3}")
        a(f"buffer_store_dwordx2 v[{r}:{r+1}], v7, s[32:35], s57 offen offset:{32*T}")
    qstore(0)
    a("s_cmp_eq_u32 s64, 1\ns_cbranch_scc1 k1_sp_epi")
    for T in range(1, 5): qstore(T)
    finish(a, 0)
    a.label("k1_sp_epi")
    T1, T2, T3, T4 = ACC+4, ACC+8, ACC+12, ACC+16
    a(f"s_lshr_b32 s60, s52, 1\ns_mul_i32 s60, s60, {CH}")
    a(f"v_mul_f32 v8, v{T1}, v{T1}")
    for r in range(1, 4): a(f"v_fmac_f32 v8, v{T1+r}, v{T1+r}")
    a(f"v_mul_f32 v9, v{T2+2}, v{T2+2}\nv_fmac_f32 v9, v{T2+3}, v{T2+3}")
    a("v_cmp_eq_u32 vcc, 1, v3\ns_nop 1\nv_cndmask_b32 v9, 0, v9, vcc\nv_add_f32 v8, v8, v9")
    a(f"v_max3_f32 v9, |v{T3}|, |v{T3+1}|, |v{T3+2}|\nv_max3_f32 v9, v9, |v{T3+3}|, |v{T4}|")
    a(f"v_max3_f32 v9, v9, |v{T4+1}|, |v{T4+2}|\nv_max_f32 v9, v9, |v{T4+3}|")
    a(f"v_mov_b32 v10, 0x7f800000\nv_cmp_gt_f32 vcc, {f32(2.0**60)}, v9")
    a("s_nop 1\nv_cndmask_b32 v8, v10, v8, vcc")
    a("v_mov_b32 v9, v8\ns_nop 1\nv_permlane16_swap_b32 v8, v9\nv_add_f32 v8, v8, v9")
    a("v_mov_b32 v9, v8\ns_nop 1\nv_permlane32_swap_b32 v8, v9\nv_add_f32 v8, v8, v9")
    a("v_cmp_o_f32 vcc, v8, v8\ns_nop 1\nv_cndmask_b32 v8, v10, v8, vcc")
    for sh in (8, 4, 2, 1):
        a(f"s_nop 1\nv_max_f32_dpp v8, v8, v8 row_ror:{sh} row_mask:0xf bank_mask:0xf")
    a(f"v_cvt_pk_bf16_f32 v{T1}, v{T1}, v{T1+1}\nv_cvt_pk_bf16_f32 v{T1+1}, v{T1+2}, v{T1+3}")
    a("v_bfe_u32 v10, v4, 5, 2\nv_and_b32 v11, 31, v4\nv_lshlrev_b32 v11, 4, v11")
    a("v_lshl_add_u32 v12, v10, 10, v11\nv_lshrrev_b32 v13, 1, v3\nv_lshl_add_u32 v12, v13, 9, v12")
    a("v_and_b32 v13, 1, v3\nv_lshl_add_u32 v12, v13, 3, v12")
    a(f"buffer_store_dwordx2 v[{T1}:{T1+1}], v12, s[32:35], s60 offen")
    a(f"s_and_b32 s61, s52, 1\ns_lshl_b32 s61, s61, 2\ns_add_u32 s61, s61, s3\ns_mul_i32 s61, s61, 608\ns_add_u32 s61, s61, s60\ns_add_u32 s61, s61, 4608")
    a("v_bfe_u32 v13, v2, 2, 1\nv_mul_u32_u24 v13, 304, v13\nv_lshrrev_b32 v14, 3, v2\nv_lshl_add_u32 v13, v14, 3, v13")
    a("v_and_b32 v14, 3, v2\nv_lshl_add_u32 v13, v14, 1, v13")
    a("v_lshl_add_u32 v14, v3, 6, v13")
    a(f"v_cvt_pk_bf16_f32 v{T3}, v{T3}, v{T3+1}\nv_cvt_pk_bf16_f32 v{T3+2}, v{T3+2}, v{T3+3}")
    a(f"v_cvt_pk_bf16_f32 v{T4}, v{T4+2}, v{T4+3}\nv_cvt_pk_bf16_f32 v{T2}, v{T2+2}, v{T2+3}")
    a(f"buffer_store_short v{T3}, v14, s[32:35], s61 offen\nbuffer_store_short_d16_hi v{T3}, v14, s[32:35], s61 offen offset:16")
    a(f"buffer_store_short v{T3+2}, v14, s[32:35], s61 offen offset:32\nbuffer_store_short_d16_hi v{T3+2}, v14, s[32:35], s61 offen offset:48")
    a("v_lshl_add_u32 v11, v10, 2, v11")
    a("s_mov_b64 exec, 0xffff0000")
    a(f"buffer_store_short v{T4}, v13, s[32:35], s61 offen offset:256\nbuffer_store_short_d16_hi v{T4}, v13, s[32:35], s61 offen offset:272")
    a(f"s_add_u32 s62, s60, 4096\nbuffer_store_dword v{T2}, v11, s[32:35], s62 offen")
    a("s_mov_b64 exec, 3")
    for r in range(4): a(f"v_mov_b32 v{16+r}, 0x3f803f80")
    a("v_mul_u32_u24 v13, 304, v1\nbuffer_store_dwordx4 v[16:19], v13, s[32:35], s61 offen offset:288")
    a(f"s_mov_b64 exec, 1\ns_lshl_b32 s62, s52, 2\ns_add_u32 s62, s62, s3\ns_lshl_b32 s62, s62, 2\ns_add_u32 s62, s62, {WS_KMAX}")
    a("buffer_store_dword v8, v1, s[32:35], s62 offen")
    finish(a, 0)

    a.label("k1_aux")
    a("s_sub_u32 s3, s3, 4\nv_and_b32 v1, 63, v0\nv_lshlrev_b32 v2, 4, v1")
    a(f"s_lshl_b32 s54, s53, 7\ns_lshl_b32 s55, s3, 5\ns_add_u32 s54, s54, s55\ns_add_u32 s54, s54, s52")
    a(f"s_mul_i32 s55, s54, {ROWB}\ns_mul_i32 s56, s3, 3072\ns_add_u32 s56, s56, {K1_ROWS}")
    DELTA = 1023 * ROWB
    a(f"v_add_u32 v3, {DELTA + 1024}, v2\nv_add_u32 v4, 1024, v2\nv_cmp_gt_u32 vcc, 8, v1\ns_mov_b32 m0, s56")
    a(f"v_add_u32 v5, {DELTA + 2048}, v2\nv_cndmask_b32 v3, v3, v4, vcc\nv_cmp_gt_u32 vcc, 16, v1\nv_mov_b32 v4, 0x7ffffff0")
    a("buffer_load_dwordx4 v2, s[24:27], s55 offen lds")
    a("s_add_u32 m0, s56, 1024\nv_cndmask_b32 v5, v4, v5, vcc\nbuffer_load_dwordx4 v3, s[24:27], s55 offen lds")
    a("s_add_u32 m0, s56, 2048\ns_nop 0\nbuffer_load_dwordx4 v5, s[24:27], s55 offen lds")
    tbl_srd(a, 36, "k1")
    a("s_mul_i32 s57, s3, 3072")
    for q in range(3):
        a(f"s_add_u32 m0, s57, {K1_TBL + 1024*q}\ns_add_u32 s58, s57, {1024*q}\nbuffer_load_dwordx4 v2, s[36:39], s58 offen lds")
    srd(a, 48, 20, ROWB)
    a("v_and_b32 v6, 31, v0\nv_mul_u32_u24 v7, 48, v6")
    GW = 100
    for q in range(3): a(f"buffer_load_dwordx4 {v(GW+4*q,4)}, v7, s[48:51], 0 offen offset:{16*q}")
    a("s_cmp_ge_u32 s3, 2\ns_cselect_b32 s40, s8, s6\ns_cselect_b32 s41, s9, s7\ns_mov_b32 s42, 1183744\ns_mov_b32 s43, 0x20000")
    a("s_and_b32 s59, s2, 7\ns_lshl_b32 s59, s59, 5\ns_lshr_b32 s60, s2, 3\ns_add_u32 s59, s59, s60")
    a("s_mul_i32 s60, s59, 4624\ns_and_b32 s61, s3, 1\ns_mul_i32 s61, s61, 3072\ns_add_u32 s60, s60, s61")
    for q in range(3):
        a(f"s_add_u32 m0, s57, {K1_WIN + 1024*q}\ns_add_u32 s58, s60, {1024*q}\nbuffer_load_dwordx4 v2, s[40:43], s58 offen lds")
    a("v_lshrrev_b32 v8, 5, v1\nv_bfe_u32 v9, v1, 2, 2\nv_lshl_add_u32 v9, v8, 2, v9\nv_mul_u32_u24 v9, 48, v9")
    a("v_bfe_u32 v10, v1, 4, 1\nv_lshl_add_u32 v9, v10, 5, v9\nv_and_b32 v10, 3, v1\nv_lshl_add_u32 v9, v10, 3, v9\nv_add_u32 v9, s56, v9")
    a(f"v_mul_u32_u24 v10, {ROWB}, v8\nv_add3_u32 v10, v10, v7, s56")
    a(f"v_add_u32 v11, {K1_TBL}, v2")
    stamp(a, 1)
    a("s_waitcnt vmcnt(0)")
    stamp(a, 2)
    a("s_barrier")
    A, FR, FI, TC, TS, DR, DI, XG, PK = 16, 28, 40, 52, 64, 112, 128, 76, 88
    for Q in range(6): a(f"ds_read_b64_tr_b16 {v(A+2*Q,2)}, v9 offset:{(Q//3)*ROWB + (Q%3)*384}")
    for u in range(3): a(f"ds_read_b128 {v(FR+4*u,4)}, v11 offset:{1024*u}\nds_read_b128 {v(FI+4*u,4)}, v11 offset:{3072+1024*u}")
    a("s_waitcnt lgkmcnt(4)")
    for u in range(3):
        if u: a(f"s_waitcnt lgkmcnt({4 - 2*u})")
        a(f"v_mfma_f32_32x32x16_bf16 {v(DR,16)}, {v(A+4*u,4)}, {v(FR+4*u,4)}, {'0' if u == 0 else v(DR,16)}")
        a(f"v_mfma_f32_32x32x16_bf16 {v(DI,16)}, {v(A+4*u,4)}, {v(FI+4*u,4)}, {'0' if u == 0 else v(DI,16)}")
    for q in range(6): a(f"ds_read_b128 {v(TC+4*q,4)}, v11 offset:{6144+1024*q}")
    for q in range(3): a(f"ds_read_b128 {v(XG+4*q,4)}, v10 offset:{16*q}")
    a("s_barrier")
    a("s_waitcnt lgkmcnt(0)")
    a(f"v_dot2_f32_bf16 v12, v{XG}, v{GW}, 0")
    for i in range(1, 12): a(f"v_dot2_f32_bf16 v12, v{XG+i}, v{GW+i}, v12")
    twiddle(a, DR, DI, TC, TS, PK, PK+6, 3, 144)
    for u in range(3):
        a(f"v_mfma_f32_32x32x16_bf16 {v(DR,16)}, {v(FR+4*u,4)}, {v(PK+4*u,4)}, {'0' if u == 0 else v(DR,16)}")
        a(f"v_mfma_f32_32x32x16_bf16 {v(DI,16)}, {v(FI+4*u,4)}, {v(PK+4*u,4)}, {'0' if u == 0 else v(DI,16)}")
    for sh in (1, 2, 4, 8):
        a(f"s_nop 1\nv_add_f32_dpp v12, v12, v12 row_shr:{sh} row_mask:0xf bank_mask:0xf bound_ctrl:0")
    a("s_nop 1\nv_add_f32_dpp v12, v12, v12 row_bcast:15 row_mask:0xa bank_mask:0xf")
    a(f"v_mul_f32 v12, {f32(-np.log2(np.e))}, v12\nv_exp_f32 v12, v12\ns_nop 0\nv_add_f32 v12, 1.0, v12\nv_rcp_f32 v12, v12")
    a(f"v_lshlrev_b32 v13, 12, v8\ns_lshl_b32 s58, s54, 2\ns_add_u32 s58, s58, {WS_G}")
    a("s_mov_b32 exec_lo, 0x80000000\ns_mov_b32 exec_hi, 0x80000000\nbuffer_store_dword v12, v13, s[32:35], s58 offen")
    a("s_mov_b32 exec_lo, 0x00ffffff\ns_mov_b32 exec_hi, 0x00ffffff")
    a(f"v_mul_u32_u24 v13, 1536, v8\nv_lshl_add_u32 v13, v6, 4, v13\ns_lshl_b32 s58, s3, 2\ns_add_u32 s58, s58, {K1_XT}\nv_add_u32 v13, s58, v13")
    for i in range(12):
        a(f"v_cvt_pk_bf16_f32 v{PK+i}, v{DR+i}, v{DI+i}")
        a(f"ds_write_b32 v13, v{PK+i} offset:{384*(8*(i//4) + i%4)}")
    a("s_mov_b64 exec, -1\ns_waitcnt lgkmcnt(0)")
    stamp(a, 3)
    a("s_barrier")
    a(f"s_mul_i32 s58, s3, 2304\nv_add_u32 v13, s58, v2\ns_mul_i32 s61, s2, 9216\ns_add_u32 s61, s61, {WS_X1}")
    a(f"v_add_u32 v14, {K1_XT}, v13")
    for q in range(3): a(f"ds_read_b128 {v(16+4*q,4)}, v14 offset:{1024*q}")
    a(f"s_lshl_b32 s58, s3, 6\nv_add_u32 v28, s58, v1")
    for rnd in range(3):
        a(f"v_add_u32 v29, {256*rnd}, v28\nv_and_b32 v30, 1, v29\nv_lshrrev_b32 v29, 1, v29")
        a(f"v_mul_u32_u24 v31, 2312, v30\nv_lshl_add_u32 v31, v29, 1, v31\nv_add_u32 v31, {K1_WIN}, v31")
        a(f"v_lshlrev_b32 v29, 13, v29\nv_lshl_add_u32 v{44+rnd}, v30, 4, v29")
        if rnd == 0:
            a("s_waitcnt lgkmcnt(0)")
            a("buffer_store_dwordx4 v[16:19], v13, s[32:35], s61 offen\nbuffer_store_dwordx4 v[20:23], v13, s[32:35], s61 offen offset:1024")
            a("s_mov_b64 exec, 0xffff\nbuffer_store_dwordx4 v[24:27], v13, s[32:35], s61 offen offset:2048\ns_mov_b64 exec, -1")
            a("s_barrier")
        for kk in range(4):
            a(f"ds_read_u16 v{32+4*rnd+kk}, v31 offset:{578*kk}\nds_read_u16_d16_hi v{48+4*rnd+kk}, v31 offset:{6144+578*kk}")
        if rnd == 0: a("s_waitcnt lgkmcnt(0)")
    a(f"s_lshl_b32 s58, s59, 5\ns_add_u32 s58, s58, {WS_WT}")
    for rnd in range(3):
        if rnd: a(f"s_waitcnt lgkmcnt({16 - 8*rnd})")
        for kk in range(4): a(f"v_or_b32 v{32+4*rnd+kk}, v{32+4*rnd+kk}, v{48+4*rnd+kk}")
        if rnd == 2: a("v_cmp_gt_u32 vcc, 66, v28\ns_and_saveexec_b64 s[62:63], vcc\ns_cbranch_execz k1_skipw")
        a(f"buffer_store_dwordx4 {v(32+4*rnd,4)}, v{44+rnd}, s[32:35], s58 offen")
    a.label("k1_skipw")
    a("s_mov_b64 exec, 1\nv_mov_b32 v16, 0\ns_lshl_b32 s58, s2, 2\ns_add_u32 s58, s58, s3\ns_lshl_b32 s58, s58, 2")
    a(f"s_add_u32 s58, s58, {WS_FLAGS}\nbuffer_store_dword v16, v16, s[32:35], s58 offen")
    a("s_barrier")
    finish(a, 0)
    a.label("k1_end")
    a("s_endpgm")


K3_LDS = 92672
def k3(a):
    a.label("k3_kernel")
    a("s_cmp_ge_u32 s2, 256\ns_cbranch_scc1 k3_end")
    stamp(a, 0)
    a("s_load_dwordx2 s[12:13], s[0:1], 56\ns_load_dwordx2 s[20:21], s[0:1], 72\ns_load_dwordx2 s[22:23], s[0:1], 88")
    a("v_lshrrev_b32 v1, 6, v0\ns_and_b32 s52, s2, 31\ns_lshr_b32 s53, s2, 5\nv_readfirstlane_b32 s3, v1")
    a("s_waitcnt lgkmcnt(0)")
    if STAMP: a("s_mov_b32 s97, s3")
    stamp(a, 5)
    srd(a, 32, 22, WS_END)
    gemm_lane_setup(a, 52, 3)
    a(f"s_mov_b32 s65, {WS_O}")
    xloads(a, 0, 32, "s65")
    srd(a, 28, 12, 576*ROWB); srd(a, 24, 20, XBYTES)
    a("s_lshl_b32 s54, s3, 3")
    gemm_addr(a, 54)
    a(f"s_mul_i32 s55, s3, {REG}\ns_mov_b32 s56, 0\ns_mul_i32 s57, s53, 160\ns_min_u32 s57, s57, 992")
    for q in range(5):
        a(f"v_mul_u32_u24 v8, {ROWB}, v{45+q}\nv_lshl_add_u32 v8, v{40+q}, 4, v8\nv_add_u32 v{DA+2*q}, s57, v8")
    def wdma(m):
        for q in range(5 if m < 4 else 3):
            a(f"s_add_u32 m0, s55, {m*5120 + q*1024}")
            a("s_mov_b64 exec, 0xffffffff" if (m == 4 and q == 2) else "s_nop 0")
            a(f"buffer_load_dwordx4 v{DA+2*q}, s[28:31], s56 offen lds")
        a(f"s_add_u32 s56, s56, {128*ROWB}")
        if m == 4: a("s_mov_b64 exec, -1")
    wdma(0); xloads(a, 1, 32, "s65"); wdma(1)
    tr_base(a)
    AT = 48
    def extra():
        a(f"v_lshl_add_u32 v7, v3, 3, v5\nv_lshlrev_b32 v8, 2, v4\ns_add_u32 s58, s57, {WS_A}\ns_mov_b32 s59, {WS_G}")
        for T in range(5): a(f"buffer_load_dwordx2 {v(AT+2*T,2)}, v7, s[32:35], s58 offen offset:{32*T}")
        a("buffer_load_dword v58, v8, s[32:35], s59 offen")
    def issue(m):
        xloads(a, m, 32, "s65"); wdma(m)
    gemm_loop(a, issue, extra, 6)
    stamp(a, 6)
    a("s_waitcnt vmcnt(0)\nv_sub_f32 v59, 1.0, v58")
    for T in range(5):
        r = ACC + 4*T
        for i in range(2):
            a(f"v_lshlrev_b32 v8, 16, v{AT+2*T+i}\nv_and_b32 v9, 0xffff0000, v{AT+2*T+i}")
            a(f"v_mul_f32 v8, v58, v8\nv_mul_f32 v9, v58, v9")
            a(f"v_fmac_f32 v8, v59, v{r+2*i}\nv_fmac_f32 v9, v59, v{r+2*i+1}")
            a(f"v_cvt_pk_bf16_f32 v{AT+2*T+i}, v8, v9")
        a(f"buffer_store_dwordx2 {v(AT+2*T,2)}, v7, s[24:27], s57 offen offset:{32*T}")
    finish(a, 2)
    a.label("k3_end")
    a("s_endpgm")


SCR = 16 * CH
CNT = SCR + 9472
K2_LDS = CNT + 64
EXB1 = 143360
def lds_poll(a, lab, vaddr, off, target, vt=14, st=66):
    a.label(lab)
    a(f"ds_read_b32 v{vt}, v{vaddr} offset:{off}\ns_waitcnt lgkmcnt(0)\nv_readfirstlane_b32 s{st}, v{vt}")
    a(f"s_cmp_ge_u32 s{st}, {target}\ns_cbranch_scc1 {lab}_ok\ns_sleep 1\ns_branch {lab}")
    a.label(lab + "_ok")
def lds_signal(a, vaddr, off, vone):
    a(f"s_mov_b64 exec, 1\nds_add_u32 v{vaddr}, v{vone} offset:{off}\ns_mov_b64 exec, -1")

SA, SB, P0, P1, O0, O1, CI = 32, 64, 96, 104, 112, 128, 144
Q0, Q1, QXA, QXB, KM, KX, V0, V1 = 176, 180, 184, 186, 188, 192, 196, 200
AK, AV, VC = 8, 9, 10
def mf(a, d, x, y, c=None):
    a(f"v_mfma_f32_32x32x16_bf16 {v(d,16)}, {v(x,4)}, {v(y,4)}, {v(d,16) if c is None else c}")
def mf2b(a, d, idx, c):
    a(f"v_mfma_f32_32x32x4_2b_bf16 {v(d,32)}, {v(KX+2*(idx>>1),2)}, {v(QXB if idx & 1 else QXA,2)}, {c} cbsz:1 abid:0")

def attn_step(a, st):
    cur, nxt = (SA, SB) if st % 2 == 0 else (SB, SA)
    koff = (st+2)*1024 if st < 2 else CH + (st-2)*1024
    voff = (st+1)*1216 if st < 3 else CH
    ex = lambda r: a(f"v_exp_f32 v{r}, v{r}")
    cv = lambda g: a(f"v_cvt_pk_bf16_f32 v{P0+g}, v{cur+2*g}, v{cur+2*g+1}")
    for g in range(16):
        if g == 0: mf2b(a, nxt, (st+1) & 3, v(CI, 32))
        if g == 4:
            mf(a, O1, V1, P1+4); a(f"s_waitcnt lgkmcnt(1)\nds_read_b128 {v(V1,4)}, v{AV} offset:{st*1216+608}")
        if g == 6:
            mf(a, nxt, KM, Q0); a("s_waitcnt lgkmcnt(1)")
            if st == 2: a(f"ds_read_b128 {v(KX,4)}, v{AK} offset:{CH+4096}")
        if g == 8:
            mf(a, O0, V0, P0)
            if st == 3: a("s_sub_u32 s60, s60, 1")
        if g == 10:
            mf(a, nxt+16, KM, Q1); a(f"s_waitcnt lgkmcnt({1 if st == 2 else 0})\nds_read_b128 {v(KM,4)}, v{AK} offset:{koff}")
        if g == 12:
            mf(a, O0, V1, P0+4)
            if st == 3: a("s_cmp_lg_u32 s60, 0")
        if g == 14:
            mf(a, O1, V0, P1)
            if st == 2: a("s_waitcnt lgkmcnt(1)")
            a(f"ds_read_b128 {v(V0,4)}, v{AV} offset:{voff}")
        ex(cur+2*g)
        if g == 15:
            ex(cur+31); cv(14)
            if st == 3: a(f"v_add_u32 v{AK}, {CH}, v{AK}\nv_add_u32 v{AV}, {CH}, v{AV}")
            cv(15)
        else:
            if g: cv(g-1)
            ex(cur+2*g+1)

def k2(a):
    a.label("k2_kernel")
    a("s_cmp_ge_u32 s2, 256\ns_cbranch_scc1 k2_end")
    stamp(a, 0)
    a("s_load_dwordx2 s[22:23], s[0:1], 88")
    a("v_lshrrev_b32 v1, 6, v0\ns_and_b32 s52, s2, 31\ns_lshr_b32 s53, s2, 5\nv_readfirstlane_b32 s3, v1")
    a(f"v_and_b32 v1, 63, v0\nv_and_b32 v2, 31, v0\nv_bfe_u32 v3, v0, 5, 1\nv_lshlrev_b32 v{AK}, 4, v1\nv_mov_b32 v{VC}, {CNT}")
    a("s_waitcnt lgkmcnt(0)")
    if STAMP: a("s_mov_b32 s97, s3")
    srd(a, 32, 22, WS_END)
    a("s_cmp_ge_u32 s3, 4\ns_cbranch_scc1 k2_aux")
    a(f"s_lshl_b32 s54, s53, 2\ns_add_u32 s54, s54, s3\ns_mul_i32 s54, s54, 36\ns_mul_i32 s55, s52, {64*ROWB}\ns_add_u32 s54, s54, s55")
    a(f"s_add_u32 s55, s54, {WS_Q}\ns_add_u32 s56, s55, {32*ROWB}\ns_mov_b32 s57, {WS_KMAX}")
    a(f"v_mul_u32_u24 v4, {ROWB}, v2\nv_lshl_add_u32 v5, v3, 4, v4\nv_mul_u32_u24 v6, {ROWB}, v1\nv_lshlrev_b32 v7, 3, v1")
    a(f"buffer_load_dwordx4 {v(Q0,4)}, v5, s[32:35], s55 offen\nbuffer_load_dwordx4 {v(Q1,4)}, v5, s[32:35], s56 offen")
    a(f"buffer_load_dword v{QXA}, v6, s[32:35], s55 offen offset:32\nbuffer_load_dwordx2 v[12:13], v7, s[32:35], s57 offen")
    a(f"v_cmp_lt_u32 vcc, 18, v2\nv_subrev_u32 v11, 20, v2\nv_cmp_gt_u32 s[58:59], 8, v11\nv_mov_b32 v11, 4")
    a(f"v_cndmask_b32 v{AV}, v2, v11, vcc\nv_cndmask_b32 v{AV}, v{AV}, 0, s[58:59]")
    a(f"v_mul_u32_u24 v11, 304, v3\nv_lshl_add_u32 v{AV}, v{AV}, 4, v11\nv_add_u32 v{AV}, 4608, v{AV}")
    for r in list(range(O0, O0+32, 2)) + list(range(CI, CI+32, 2)) + [P1+4, P1+6, V1, V1+2]: a(f"v_mov_b64 {v(r,2)}, 0")
    a(f"v_mov_b32 v{QXA+1}, 0\nv_mov_b32 v{QXB}, 0")
    a("s_barrier")
    a("s_waitcnt vmcnt(0)")
    stamp(a, 1)
    a(f"v_mov_b32 v{QXB+1}, v{QXA}\nv_max_f32 v12, v12, v13")
    a(f"v_dot2_f32_bf16 v14, v{Q0}, v{Q0}, 0\nv_dot2_f32_bf16 v15, v{Q1}, v{Q1}, 0")
    for i in range(1, 4): a(f"v_dot2_f32_bf16 v14, v{Q0+i}, v{Q0+i}, v14\nv_dot2_f32_bf16 v15, v{Q1+i}, v{Q1+i}, v15")
    for m in ("row_ror:8 row_mask:0xf", "row_ror:4 row_mask:0xf", "row_ror:2 row_mask:0xf", "row_ror:1 row_mask:0xf", "row_bcast:15 row_mask:0xa", "row_bcast:31 row_mask:0xc"):
        a(f"s_nop 1\nv_max_f32_dpp v12, v12, v12 {m} bank_mask:0xf")
    a("s_nop 2\nv_permlane32_swap_b32 v14, v15\nv_readlane_b32 s58, v12, 63\nv_add_f32 v14, v14, v15")
    a(f"v_dot2_f32_bf16 v14, v{QXA}, v{QXA}, v14\ns_nop 2\nv_mul_f32 v14, s58, v14")
    a(f"v_cmp_ge_f32 vcc, {f32(BOUND2)}, v14\ns_nop 3\ns_cmp_eq_u64 vcc, exec\ns_cbranch_scc1 k2_safe")
    for lv, tg in ((0, 4), (1, 4), (2, 4), (3, 2)): lds_poll(a, f"k2_fb{lv}", VC, 4*lv, tg)
    a("v_mov_b32 v12, 0xff800000\nv_mov_b32 v13, 0xff800000\ns_mov_b32 s60, 16")
    a.label("k2_fbl")
    a(f"ds_read_b128 {v(KX,4)}, v{AK} offset:4096")
    for st in range(4):
        a(f"ds_read_b128 {v(KM,4)}, v{AK} offset:{1024*st}\ns_waitcnt lgkmcnt(0)")
        mf2b(a, SA, st, "0"); mf(a, SA, KM, Q0); mf(a, SA+16, KM, Q1)
        for i in range(0, 16, 2): a(f"v_max3_f32 v12, v12, v{SA+i}, v{SA+i+1}")
        for i in range(0, 16, 2): a(f"v_max3_f32 v13, v13, v{SA+16+i}, v{SA+16+i+1}")
    a(f"v_add_u32 v{AK}, {CH}, v{AK}\ns_sub_u32 s60, s60, 1\ns_cmp_lg_u32 s60, 0\ns_cbranch_scc1 k2_fbl")
    a(f"v_lshlrev_b32 v{AK}, 4, v1\nv_mov_b32 v14, v12\nv_mov_b32 v15, v13")
    a("v_permlane32_swap_b32 v12, v14\nv_permlane32_swap_b32 v13, v15\nv_max_f32 v12, v12, v14\nv_max_f32 v13, v13, v15")
    for i in range(16): a(f"v_sub_f32 v{CI+i}, 0, v12\nv_sub_f32 v{CI+16+i}, 0, v13")
    a.label("k2_safe")
    lds_poll(a, "k2_l0", VC, 0, 4)
    stamp(a, 2)
    a(f"ds_read_b128 {v(KX,4)}, v{AK} offset:4096\nds_read_b128 {v(KM,4)}, v{AK}\nds_read_b128 {v(V0,4)}, v{AV}\ns_waitcnt lgkmcnt(1)")
    mf2b(a, SA, 0, v(CI, 32)); mf(a, SA, KM, Q0); mf(a, SA+16, KM, Q1)
    a(f"ds_read_b128 {v(KM,4)}, v{AK} offset:1024\ns_waitcnt lgkmcnt(0)")
    a("s_mov_b32 s60, 1\ns_mov_b32 s61, 0x020a03\ns_mov_b32 s62, 0x020404\ns_nop 7")
    a.label("k2_loop")
    for st in range(4): attn_step(a, st)
    a("s_cbranch_scc1 k2_loop")
    a("s_cmp_eq_u32 s61, 0\ns_cbranch_scc1 k2_done")
    a(f"v_add_u32 v{VC}, 4, v{VC}\ns_and_b32 s60, s61, 0xff\ns_lshr_b32 s61, s61, 8\ns_and_b32 s63, s62, 0xff\ns_lshr_b32 s62, s62, 8")
    lds_poll(a, "k2_lv", VC, 0, "s63")
    a("s_branch k2_loop")
    a.label("k2_done")
    mf(a, O1, V1, P1+4)
    stamp(a, 3)
    a(f"s_add_u32 s55, s54, {WS_O}\ns_add_u32 s56, s55, {32*ROWB}\nv_lshl_add_u32 v5, v3, 3, v4")
    for O, so in ((O0, 55), (O1, 56)):
        a(f"v_mov_b32 v12, v{O+10}\nv_mov_b32 v13, v{O+10}\ns_nop 1\nv_permlane32_swap_b32 v12, v13\nv_rcp_f32 v12, v12\ns_nop 0")
        for i in range(10): a(f"v_mul_f32 v{O+i}, v12, v{O+i}")
        for i in range(5): a(f"v_cvt_pk_bf16_f32 v{O+i}, v{O+2*i}, v{O+2*i+1}")
        a(f"buffer_store_dwordx2 {v(O,2)}, v5, s[32:35], s{so} offen\nbuffer_store_dwordx2 {v(O+2,2)}, v5, s[32:35], s{so} offen offset:16")
        a(f"s_mov_b64 exec, 0xffffffff\nbuffer_store_dword v{O+4}, v5, s[32:35], s{so} offen offset:32\ns_mov_b64 exec, -1")
    finish(a, 1)

    a.label("k2_aux")
    a("s_setprio 3\ns_sub_u32 s3, s3, 4\ns_lshl_b32 s54, s3, 10")
    def kv(n0, n1, base="s54"):
        for n in range(n0, n1):
            a(f"s_add_u32 s55, {base}, {4096*n}\ns_mov_b32 m0, s55\ns_nop 0\nbuffer_load_dwordx4 v{AK}, s[32:35], s55 offen lds")
    kv(0, 4)
    a(f"v_mov_b32 v11, 0\nv_lshl_add_u32 v12, v1, 2, v{VC}\ns_mov_b64 exec, 0xffff\nds_write_b32 v12, v11\ns_mov_b64 exec, -1\nv_mov_b32 v11, 1")
    kv(4, 12)
    a("s_waitcnt lgkmcnt(0)\ns_barrier")
    a("s_waitcnt vmcnt(8)"); lds_signal(a, VC, 0, 11)
    stamp(a, 1)
    kv(12, 24)
    a("s_waitcnt vmcnt(12)"); lds_signal(a, VC, 4, 11)
    kv(24, 35)
    tbl_srd(a, 36, "k2")
    a("s_lshr_b32 s56, s3, 1\ns_and_b32 s57, s3, 1")
    a("s_and_b32 s58, s2, 7\ns_lshr_b32 s59, s2, 3")
    a("s_lshl_b32 s60, s58, 5\ns_add_u32 s60, s60, s59")
    a("s_lshl_b32 s61, s58, 2\ns_add_u32 s61, s61, s59\ns_cmp_eq_u32 s2, 32\ns_cselect_b32 s61, 32, s61\ns_add_u32 s61, s61, 256")
    a("s_cmp_gt_u32 s2, 32\ns_cselect_b32 s61, 999, s61\ns_cmp_eq_u32 s56, 0\ns_cselect_b32 s60, s60, s61")
    a("s_cmp_gt_u32 s60, 288\ns_cbranch_scc0 k2_task")
    a("s_waitcnt vmcnt(0)"); lds_signal(a, VC, 8, 11)
    a("s_branch k2_defer")
    a.label("k2_task")
    XA, TA, DR, DI, TC, TS, FC, FS, FN, WV, PR, PI, TMP = 16, 48, 112, 128, 144, 160, 176, 184, 192, 200, 216, 224, 232
    a("s_sub_u32 s61, 576, s60\ns_cmp_eq_u32 s60, 0\ns_cselect_b32 s61, 0, s61")
    a(f"v_mul_u32_u24 v4, 9216, v1\ns_lshl_b32 s62, s60, 4\ns_add_u32 s62, s62, {WS_X1}\ns_lshl_b32 s63, s61, 4\ns_add_u32 s63, s63, {WS_X1}")
    a(f"s_lshl_b32 s64, s57, 14\ns_add_u32 s64, s64, {TOFF['TA']}")
    for t in range(8):
        sx = 62 + (t >> 2)
        a(f"buffer_load_dwordx4 {v(XA+4*t,4)}, v4, s[32:35], s{sx} offen\ns_add_u32 s{sx}, s{sx}, {64*9216}")
        a(f"s_add_u32 s65, s64, {1024*t}\nbuffer_load_dwordx4 {v(TA+4*t,4)}, v{AK}, s[36:39], s65 offen")
        a(f"s_add_u32 s65, s64, {8192+1024*t}\nbuffer_load_dwordx4 {v(TA+32+4*t,4)}, v{AK}, s[36:39], s65 offen")
    def tload(dst, n, sreg):
        for i in range(n):
            if i and i % 4 == 0: a(f"s_add_u32 s{sreg}, s{sreg}, 4096")
            a(f"buffer_load_dwordx4 {v(dst+4*i,4)}, v{AK}, s[36:39], s{sreg} offen offset:{1024*(i%4)}")
    a(f"s_lshl_b32 s65, s57, 13\ns_add_u32 s65, s65, {TOFF['TWA']}"); tload(TC, 8, 65)
    a(f"s_mov_b32 s65, {TOFF['F32']}"); tload(FC, 6, 65)
    a(f"v_lshlrev_b32 v5, 2, v2\nv_lshl_add_u32 v5, v3, 10, v5\ns_lshl_b32 s65, s60, 13\ns_lshl_b32 s66, s57, 7\ns_add_u32 s65, s65, s66\ns_add_u32 s65, s65, {WS_WT}")
    for i in range(16):
        if i == 8: a("s_add_u32 s65, s65, 4096")
        a(f"buffer_load_dword v{WV+i}, v5, s[32:35], s65 offen offset:{2048*((i>>2)&1) + 256*(i&3)}")
    a("s_waitcnt vmcnt(54)"); lds_signal(a, VC, 8, 11)
    stamp(a, 2)
    for t in range(8):
        a(f"s_waitcnt vmcnt({3*(7-t)+30})")
        mf(a, DR, XA+4*t, TA+4*t, "0" if t == 0 else None); mf(a, DI, XA+4*t, TA+32+4*t, "0" if t == 0 else None)
    a(f"s_lshl_b32 s65, s57, 13\ns_add_u32 s65, s65, {TOFF['TWB']}"); tload(XA, 8, 65)
    a("s_cmp_eq_u32 s60, s61\ns_cselect_b32 s65, 2, s57")
    a(f"s_lshl_b32 s65, s65, 14\ns_add_u32 s65, s65, {TOFF['TB']}\ns_lshl_b32 s66, s57, 12\ns_sub_u32 s67, 4096, s66")
    a("s_add_u32 s66, s66, s65\ns_add_u32 s67, s67, s65")
    for o in range(2):
        tload(TA+32*o, 4, 66); tload(TA+32*o+16, 4, 67)
        if o == 0: a("s_add_u32 s66, s66, 8192\ns_add_u32 s67, s67, 8192")
    a("s_waitcnt vmcnt(46)")
    twiddle(a, DR, DI, TC, TS, PR, PI, 4, TMP)
    a("s_waitcnt vmcnt(40)")
    for u in range(2):
        mf(a, DR, FC+4*u, PR+4*u, "0" if u == 0 else None); mf(a, DI, FC+4*u, PI+4*u, "0" if u == 0 else None)
    for u in range(2):
        mf(a, DR, FS+4*u, PI+4*u); mf(a, DI, FN+4*u, PR+4*u)
    a("s_waitcnt vmcnt(24)")
    for i in range(16): a(f"v_lshlrev_b32 v{TC+i}, 16, v{WV+i}\nv_and_b32 v{TS+i}, 0xffff0000, v{WV+i}")
    twiddle(a, DR, DI, TC, TS, PR, PI, 4, TMP, conj=True)
    for u in range(2):
        mf(a, DR, PR+4*u, FC+4*u, "0" if u == 0 else None); mf(a, DI, PI+4*u, FC+4*u, "0" if u == 0 else None)
    for u in range(2):
        mf(a, DR, PI+4*u, FN+4*u); mf(a, DI, PR+4*u, FS+4*u)
    a(f"s_mul_i32 s64, s56, {EXB1 - SCR}\ns_add_u32 s64, s64, {SCR}\ns_lshl_b32 s65, s57, 12\ns_sub_u32 s66, 4096, s65\ns_add_u32 s65, s65, s64\ns_add_u32 s66, s66, s64")
    a(f"v_add_u32 v6, s65, v{AK}\nv_add_u32 v7, s66, v{AK}\ns_lshl_b32 s64, s56, 2\nv_add_u32 v13, s64, v{VC}")
    a("s_waitcnt vmcnt(16)")
    twiddle(a, DR, DI, XA, XA+16, PR, PI, 4, TMP)
    for q in range(4): a(f"ds_write_b128 v6, {v(PR+4*q,4)} offset:{1024*q}")
    a("s_waitcnt lgkmcnt(0)"); lds_signal(a, 13, 16, 11)
    a("s_waitcnt vmcnt(0)")
    for t in range(4):
        mf(a, DR, TA+4*t, PR+4*t, "0" if t == 0 else None); mf(a, DI, TA+32+4*t, PR+4*t, "0" if t == 0 else None)
    lds_poll(a, "k2_ex", 13, 16, 2)
    for q in range(4): a(f"ds_read_b128 {v(WV+4*q,4)}, v7 offset:{1024*q}")
    for t in range(4):
        a(f"s_waitcnt lgkmcnt({3-t})")
        mf(a, DR, TA+16+4*t, WV+4*t); mf(a, DI, TA+48+4*t, WV+4*t)
    a("s_cmp_eq_u32 s57, 0\ns_cselect_b32 s64, s60, s61")
    a(f"s_lshl_b32 s64, s64, 12\ns_add_u32 s64, s64, {WS_Z}\nv_lshlrev_b32 v6, 4, v2\nv_lshl_add_u32 v6, v3, 9, v6")
    a("s_cmp_eq_u32 s56, 0\ns_cbranch_scc1 k2_norel"); lds_signal(a, VC, 24, 11); a.label("k2_norel")
    for g in range(4):
        for r in range(4): a(f"v_cvt_pk_bf16_f32 v{PR+4*g+r}, v{DR+4*g+r}, v{DI+4*g+r}")
        a(f"buffer_store_dwordx4 {v(PR+4*g,4)}, v6, s[32:35], s64 offen offset:{1024*g} sc1")
    a("s_cmp_eq_u32 s56, 0\ns_cbranch_scc1 k2_flag")
    lds_poll(a, "k2_rel", VC, 24, 2)
    a.label("k2_defer")
    a(f"s_lshl_b32 s54, s57, 12\ns_add_u32 s54, s54, {EXB1}")
    for n in range(4):
        a(f"s_add_u32 s55, s54, {1024*n}\ns_mov_b32 m0, s55\ns_nop 0\nbuffer_load_dwordx4 v{AK}, s[32:35], s55 offen lds")
    a("s_waitcnt vmcnt(0)"); lds_signal(a, VC, 12, 11)
    a.label("k2_flag")
    a(f"s_waitcnt vmcnt(0)\ns_lshl_b32 s54, s2, 2\ns_add_u32 s54, s54, s3\ns_lshl_b32 s54, s54, 2\ns_add_u32 s54, s54, {WS_FLAGS}\nv_mov_b32 v12, 0")
    a("s_mov_b64 exec, 1\nbuffer_store_dword v11, v12, s[32:35], s54 offen sc1\ns_mov_b64 exec, -1")
    stamp(a, 3)
    A3, GR, GI, FR, FI = 16, 28, 40, 52, 64
    a(f"s_mov_b32 s65, {TOFF['P3A']}"); tload(GR, 6, 65)
    a(f"s_mov_b32 s65, {TOFF['F24']}"); tload(FR, 6, 65)
    a(f"s_mov_b32 s65, {TOFF['TW3']}"); tload(TC, 3, 65)
    a(f"s_mov_b32 s65, {TOFF['TW3'] + 3072}"); tload(TS, 3, 65)
    a("s_cmp_eq_u32 s3, 0\ns_cbranch_scc0 k2_wgo")
    a(f"s_mov_b32 s65, {WS_FLAGS}")
    a.label("k2_gpoll")
    for q in range(4): a(f"buffer_load_dwordx4 {v(80+4*q,4)}, v{AK}, s[32:35], s65 offen offset:{1024*q} sc1")
    a("s_waitcnt vmcnt(0)")
    for i in range(1, 16): a(f"v_and_b32 v80, v80, v{80+i}")
    a("v_cmp_eq_u32 vcc, 1, v80\ns_nop 3\ns_cmp_eq_u64 vcc, exec\ns_cbranch_scc1 k2_gok\ns_sleep 8\ns_branch k2_gpoll")
    a.label("k2_gok")
    a("buffer_inv sc1\ns_waitcnt vmcnt(0)"); lds_signal(a, VC, 28, 11)
    a.label("k2_wgo")
    lds_poll(a, "k2_go", VC, 28, 1)
    stamp(a, 4)
    a(f"s_mul_i32 s54, s3, 144\nv_add_u32 v4, s54, v1\nv_lshlrev_b32 v4, 12, v4\ns_lshl_b32 s55, s58, 9\ns_lshl_b32 s60, s59, 4\ns_add_u32 s55, s55, s60\ns_add_u32 s55, s55, {WS_Z}")
    a(f"s_lshl_b32 s54, s54, 4\ns_add_u32 s54, s54, {SCR}")
    for q in range(3):
        a(f"s_add_u32 m0, s54, {1024*q}")
        a("s_mov_b64 exec, 0xffff" if q == 2 else "s_nop 0")
        a(f"buffer_load_dwordx4 v4, s[32:35], s55 offen lds\ns_add_u32 s55, s55, {64*4096}")
    a("s_mov_b64 exec, -1")
    a(f"v_mul_u32_u24 v5, 1536, v3\nv_lshl_add_u32 v5, v2, 4, v5\ns_lshl_b32 s54, s3, 2\ns_add_u32 s54, s54, {SCR}\nv_add_u32 v5, s54, v5")
    a("s_waitcnt vmcnt(0)"); lds_signal(a, VC, 32, 11)
    lds_poll(a, "k2_p3", VC, 32, 4)
    for i in range(12): a(f"ds_read_b32 v{A3+i}, v5 offset:{384*(8*(i>>2) + (i&3))}")
    for t in range(3):
        a(f"s_waitcnt lgkmcnt({8-4*t})")
        mf(a, DR, A3+4*t, GR+4*t, "0" if t == 0 else None); mf(a, DI, A3+4*t, GI+4*t, "0" if t == 0 else None)
    twiddle(a, DR, DI, TC, TS, PR+6, PR, 3, TMP)
    for u in range(3):
        mf(a, DI, PR+4*u, FR+4*u, "0" if u == 0 else None); mf(a, DR, PR+4*u, FI+4*u, "0" if u == 0 else None)
    a(f"s_lshl_b32 s54, s58, 7\ns_lshl_b32 s55, s3, 5\ns_add_u32 s54, s54, s55\ns_add_u32 s54, s54, s59\ns_mul_i32 s54, s54, {ROWB}")
    a(f"s_add_u32 s54, s54, {WS_A}\ns_add_u32 s55, s54, {1024*ROWB}\nv_mul_u32_u24 v5, 48, v2\nv_lshl_add_u32 v5, v3, 3, v5")
    a("s_mov_b32 exec_lo, 0x00ffffff\ns_mov_b32 exec_hi, 0x00ffffff")
    for D, so in ((DI, 55), (DR, 54)):
        for g in range(3):
            a(f"v_cvt_pk_bf16_f32 v{D+4*g}, v{D+4*g}, v{D+4*g+1}\nv_cvt_pk_bf16_f32 v{D+4*g+1}, v{D+4*g+2}, v{D+4*g+3}")
            a(f"buffer_store_dwordx2 {v(D+4*g,2)}, v5, s[32:35], s{so} offen offset:{16*g}")
    finish(a, 1)
    a.label("k2_end")
    a("s_endpgm")

def twiddle(a, DR, DI, TC, TS, PR, PI, ng, tmp, conj=False):
    neg = " neg_lo:[1,0,0] neg_hi:[1,0,0]"
    for i in range(0, 4*ng, 2):
        t = tmp + 4*((i//2) % 2)
        a(f"v_pk_mul_f32 {v(t,2)}, {v(DR+i,2)}, {v(TC+i,2)}")
        a(f"v_pk_mul_f32 {v(t+2,2)}, {v(DI+i,2)}, {v(TC+i,2)}")
        a(f"v_pk_fma_f32 {v(t,2)}, {v(DI+i,2)}, {v(TS+i,2)}, {v(t,2)}" + (neg if conj else ""))
        a(f"v_pk_fma_f32 {v(t+2,2)}, {v(DR+i,2)}, {v(TS+i,2)}, {v(t+2,2)}" + ("" if conj else neg))
        a(f"v_cvt_pk_bf16_f32 v{PR+i//2}, v{t}, v{t+1}")
        a(f"v_cvt_pk_bf16_f32 v{PI+i//2}, v{t+2}, v{t+3}")

def descriptor(name, vgpr, sgpr=100):
    return f""".amdhsa_kernel {name}
  .amdhsa_next_free_vgpr {vgpr}
  .amdhsa_next_free_sgpr {sgpr}
  .amdhsa_accum_offset {(vgpr+3)//4*4}
  .amdhsa_group_segment_fixed_size 0
  .amdhsa_kernarg_size 96
  .amdhsa_user_sgpr_count 2
  .amdhsa_user_sgpr_kernarg_segment_ptr 1
  .amdhsa_system_sgpr_workgroup_id_x 1
.end_amdhsa_kernel
"""

def build(kernels):
    head = open(f"cdna_kernels/{NAME}.s.ref").read().split("; Override launch")[0]
    out = head
    for name, fn, block, lds, vg in kernels:
        out += f"; @launch kernel={name} grid=(256,1,1) block=({block},1,1) lds={lds}\n"
    out += '.amdgcn_target "amdgcn-amd-amdhsa--gfx950"\n.text\n'
    for name, fn, block, lds, vg in kernels:
        a = Asm(); fn(a)
        body = autopad(a.text())
        out += f".globl {name}\n.p2align 8\n.type {name},@function\n" + body
    out += '.section .rodata,"a"\n'
    for name, fn, block, lds, vg in kernels:
        out += ".p2align 6\n" + descriptor(name, vg)
    out += ".p2align 8\n.type tbl_blob,@object\ntbl_blob:\n"
    w = np.frombuffer(BLOB, np.uint32)
    for i in range(0, len(w), 16):
        out += ".long " + ",".join("0x%x" % x for x in w[i:i+16]) + "\n"
    out += f".size tbl_blob, {len(BLOB)}\n"
    return out

if __name__ == "__main__":
    ks = [("k1_kernel", k1, 512, K1_LDS, 200), ("k2_kernel", k2, 512, K2_LDS, 240), ("k3_kernel", k3, 256, K3_LDS, 200)]
    STAMP = "stamp" in sys.argv[2:]
    path = sys.argv[1] if len(sys.argv) > 1 else f"cdna_kernels/{NAME}.s"
    open(path, "w").write(build(ks))
```
